```python
import torch

def _softmax(x, axis=-1):
    return torch.softmax(x, dim=axis)
def _gelu(x):
    return torch.nn.functional.gelu(x, approximate="tanh")
def _silu(x):
    return torch.nn.functional.silu(x)
def _sigmoid(x):
    return torch.sigmoid(x)
def _layernorm(x, axis=-1, eps=1e-5):
    m = x.mean(dim=axis, keepdim=True)
    v = x.var(dim=axis, keepdim=True, unbiased=False)
    return (x - m) / torch.sqrt(v + eps)
def _scatter_add(tgt, idx, src, axis=0):
    return tgt.clone().index_add_(axis, idx, src)
def _segment_sum(src, seg, n):
    out = torch.zeros((n,) + src.shape[1:], dtype=src.dtype)
    return out.index_add_(0, seg, src)
def _pad(x, pw):
    flat = tuple(v for pair in reversed(pw) for v in pair)
    return torch.nn.functional.pad(x, flat)

kernel_name = 'gated_mix__linear_attn_block__glu_gated_reglu__prompt'

def setup_inputs():

    _w = (lambda a: (lambda t: t.to(torch.bfloat16) if t.is_floating_point() else t)(torch.as_tensor(a)))
    def _A_setup():
        B, S, D = 1, 2048, 512
        return {
            "x": _w((lambda *s: torch.randn(*s, dtype=torch.bfloat16) * 0.05)(B, S, D)),
            "wqkv": _w((lambda *s: torch.randn(*s, dtype=torch.bfloat16) * 0.8)(D, 3 * D)),
            "wo": _w((lambda *s: torch.randn(*s, dtype=torch.bfloat16) * 0.05)(D, D)),
        }
    _A_in = _A_setup()

    def _B_setup():
        B, S, D, F = 1, 2048, 512, 1792
        return {
            "x": _w((lambda *s: torch.randn(*s, dtype=torch.bfloat16) * 0.05)(B, S, D)),
            "W_gate": _w((lambda *s: torch.randn(*s, dtype=torch.bfloat16) * 1.6)(D, F) * (2.0 / D) ** 0.5),
            "W_up": _w((lambda *s: torch.randn(*s, dtype=torch.bfloat16) * 1.6)(D, F) * (2.0 / D) ** 0.5),
            "W_down": _w((lambda *s: torch.randn(*s, dtype=torch.bfloat16) * 1.6)(F, D) * (1.0 / F) ** 0.5),
        }
    _B_in = _B_setup()

    return {
        "A_x": _A_in["x"],
        "A_wqkv": _A_in["wqkv"],
        "A_wo": _A_in["wo"],
        "B_x": _B_in["x"],
        "B_W_gate": _B_in["W_gate"],
        "B_W_up": _B_in["W_up"],
        "B_W_down": _B_in["W_down"],
        "gate_w": _w((lambda *s: torch.randn(*s, dtype=torch.bfloat16) * 0.05)(512) * 16.0),
    }

def reference(A_x, A_wqkv, A_wo, B_x, B_W_gate, B_W_up, B_W_down, gate_w):
    def _A_ref(x, wqkv, wo):
        B, S, D = x.shape
        H = 32; Dh = D // H
        qkv = (lambda x, *d: x.permute(*d))((x @ wqkv).reshape(B, S, 3, H, Dh), 2, 0, 3, 1, 4)
        q, k, v = qkv[0], qkv[1], qkv[2]
        phi = lambda t: torch.where(t > 0, t + 1, torch.exp(t)) + 1e-6
        pq, pk = phi(q), phi(k)
        kv = torch.einsum("bhsd,bhse->bhde", pk, v)
        z = torch.einsum("bhsd->bhd", pk)
        num = torch.einsum("bhqd,bhde->bhqe", pq, kv)
        den = torch.einsum("bhqd,bhd->bhq", pq, z)[..., None] + 1e-6
        o = num / den
        return (lambda x, *d: x.permute(*d))(o, 0, 2, 1, 3).reshape(B, S, D) @ wo

    def _B_ref(x, W_gate, W_up, W_down):
        gate = torch.einsum("bsd,df->bsf", x, W_gate)
        up = torch.einsum("bsd,df->bsf", x, W_up)
        gate = gate * (lambda x, dt: x.to(dt))(gate > 0, gate.dtype)
        h = gate * up
        return torch.einsum("bsf,fd->bsd", h, W_down)

    x = A_x
    g = _sigmoid((x * gate_w).sum(-1, keepdims=True))
    a = _A_ref(x, A_wqkv, A_wo)
    b = _B_ref(x, B_W_gate, B_W_up, B_W_down)
    return g * a + (1 - g) * b
```

```python
NAME = "gated_mix__linear_attn_block__glu_gated_reglu__prompt"

class Asm:
    def __init__(self):
        self.lines = []
    def __call__(self, s=""):
        for l in s.split("\n"):
            self.lines.append(l)
    def label(self, n):
        self.lines.append(n + ":")
    def text(self):
        return "\n".join(self.lines) + "\n"

def header(grid, block, lds, kname=NAME + "_kernel"):
    return f"""; @launch grid=({grid},1,1) block=({block},1,1) lds={lds}
.amdgcn_target "amdgcn-amd-amdhsa--gfx950"
.text
.globl {kname}
.p2align 8
.type {kname},@function
{kname}:
"""

def footer(vgpr=512, sgpr=102, accum=256, kname=NAME + "_kernel"):
    return f""".section .rodata,"a"
.p2align 6
.amdhsa_kernel {kname}
  .amdhsa_next_free_vgpr {vgpr}
  .amdhsa_next_free_sgpr {sgpr}
  .amdhsa_accum_offset {accum}
  .amdhsa_group_segment_fixed_size 0
  .amdhsa_kernarg_size 88
  .amdhsa_user_sgpr_count 2
  .amdhsa_user_sgpr_kernarg_segment_ptr 1
  .amdhsa_system_sgpr_workgroup_id_x 1
.end_amdhsa_kernel
"""
```

```python
import re

def _expand(tok):
    tok = tok.strip()
    tok = tok.lstrip('-')
    if tok.startswith('abs(') or tok.startswith('|'):
        tok = tok.replace('abs(', '').replace(')', '').replace('|', '')
    m = re.fullmatch(r'([vas])\[(\d+):(\d+)\]', tok)
    if m:
        return [f"{m.group(1)}{i}" for i in range(int(m.group(2)), int(m.group(3)) + 1)]
    m = re.fullmatch(r'([vas])(\d+)', tok)
    if m:
        return [tok]
    if tok in ('vcc', 'vcc_lo', 'vcc_hi'):
        return ['vcc']
    if tok in ('exec', 'exec_lo', 'exec_hi'):
        return ['exec']
    if tok == 'm0':
        return ['m0']
    return []

TRANS = ('v_exp_', 'v_log_', 'v_rcp_', 'v_rsq_', 'v_sqrt_', 'v_sin_', 'v_cos_')

class Ins:
    __slots__ = ('text', 'op', 'cls', 'w', 'r', 'A', 'B', 'C', 'passes', 'dpp', 'wide_store', 'dma', 'states')

def parse(text):
    t = text.split(';')[0].strip()
    op, _, rest = t.partition(' ')
    parts = [p.strip() for p in rest.split(',')] if rest.strip() else []
    mods = ''
    if parts:
        last = parts[-1].split()
        parts[-1] = last[0] if last else ''
        mods = ' '.join(last[1:])
    I = Ins(); I.text = text; I.op = op; I.w = []; I.r = []; I.A = I.B = I.C = []; I.passes = 0
    I.dpp = ('row_' in mods or 'quad_perm' in mods or 'wave_' in mods or '_dpp' in op); I.wide_store = []; I.dma = False; I.states = 1
    ex = [_expand(p) for p in parts]
    if op.startswith('v_mfma'):
        I.cls = 'mfma'; I.w = ex[0]; I.A = ex[1]; I.B = ex[2]; I.C = ex[3]; I.r = I.A + I.B + I.C
        I.passes = 8 if '32x32' in op else 4
    elif op.startswith('v_'):
        I.cls = 'valu'
        I.w = list(ex[0]); I.r = sum(ex[1:], [])
        if op.startswith('v_permlane') and 'swap' in op:
            I.w = ex[0] + ex[1]; I.r = ex[0] + ex[1]
        if op.startswith(('v_fmac', 'v_dot2c', 'v_pk_fmac')) or I.dpp or op.startswith('v_writelane'):
            I.r = I.r + ex[0]
        if '_co_' in op and len(ex) > 1:
            I.w = ex[0] + ex[1]; I.r = sum(ex[2:], [])
        if op.startswith('v_cmpx'):
            I.w.append('exec')
    elif op.startswith('ds_'):
        I.cls = 'ds'
        if op.startswith(('ds_read', 'ds_bpermute', 'ds_permute', 'ds_swizzle')):
            I.w = ex[0]; I.r = sum(ex[1:], [])
        else:
            I.r = sum(ex, [])
    elif op.startswith(('buffer_', 'global_')):
        I.cls = 'vmem'
        toks = mods.split()
        if 'load' in op:
            if 'lds' in toks or '_lds_' in op:
                I.dma = True; I.r = sum(ex, []) + ['m0']
            else:
                I.w = ex[0]; I.r = sum(ex[1:], [])
        else:
            I.r = sum(ex, [])
            if 'x4' in op or 'x3' in op:
                I.wide_store = ex[0] if op.startswith('buffer_') else ex[1]
    elif op.startswith(('s_load', 's_memtime', 's_memrealtime', 's_buffer_load')):
        I.cls = 'smem'; I.w = ex[0]; I.r = sum(ex[1:], [])
    elif op == 's_nop':
        I.cls = 'nop'; I.states = int(parts[0], 0) + 1
    elif op.startswith(('s_waitcnt', 's_barrier', 's_branch', 's_cbranch', 's_endpgm', 's_sleep', 's_setprio')):
        I.cls = 'ctl'
    elif op.startswith('s_cmp') or op.startswith('s_bitcmp'):
        I.cls = 'salu'; I.r = sum(ex, [])
    elif op.startswith('s_'):
        I.cls = 'salu'; I.w = ex[0]; I.r = sum(ex[1:], [])
        if op.startswith(('s_addk', 's_mulk')): I.r += ex[0]
        if 'saveexec' in op: I.w = I.w + ['exec']
    else:
        raise ValueError("cannot parse: " + text)
    return I

class Emit:
    def __init__(self):
        self.out = []
        self.vmq = []
        self.lgq = []
        self.smem = False
        self.pend = {}
        self.hist = []
        self.pos = 0
        self.tok = 0
        self.nnop = 0
        self.count = {}
    def raw(self, s):
        self.out.append(s)
    def label(self, n):
        self.out.append(n + ":")
    def comment(self, s):
        self.out.append("    ; " + s)
    def _push(self, I):
        self.out.append("    " + I.text)
        self.hist.append((I, self.pos))
        self.pos += I.states
        if len(self.hist) > 40: self.hist.pop(0)
        self.count[I.cls] = self.count.get(I.cls, 0) + 1
    def wait(self, vm=None, lg=None):
        parts = []
        if vm is not None:
            assert vm <= 63
            done = self.vmq[:len(self.vmq) - vm] if vm < len(self.vmq) else []
            if done:
                parts.append(f"vmcnt({vm})")
                self.vmq = self.vmq[len(done):]
                ds = set(done)
                self.pend = {r: t for r, t in self.pend.items() if not (t[0] == 'vm' and t[1] in ds)}
        if lg is not None:
            if self.smem: lg = 0
            lg = min(lg, 15)
            done = self.lgq[:len(self.lgq) - lg] if lg < len(self.lgq) else []
            if done or self.smem:
                parts.append(f"lgkmcnt({lg})")
                self.lgq = self.lgq[len(done):]
                ds = set(done)
                self.pend = {r: t for r, t in self.pend.items() if not ((t[0] == 'lg' and t[1] in ds) or t[0] == 'sm')}
                self.smem = False
        if parts:
            self._push(parse("s_waitcnt " + " ".join(parts)))
    def vm_done(self, tok):
        return tok not in self.vmq
    def wait_tok(self, *toks):
        vm = None; lg = None
        for tok in toks:
            if tok in self.vmq:
                n = len(self.vmq) - 1 - self.vmq.index(tok)
                vm = n if vm is None else min(vm, n)
            if tok in self.lgq:
                n = len(self.lgq) - 1 - self.lgq.index(tok)
                lg = n if lg is None else min(lg, n)
        self.wait(vm, lg)
    def _need(self, I):
        need = 0
        rs = set(I.r); ws = set(I.w); rw = rs | ws
        for P, p in self.hist:
            dist = self.pos - (p + P.states)
            k = 0
            pw = set(P.w)
            if P.cls == 'mfma':
                big = {4: 8, 8: 12}[P.passes]; ov = {4: 6, 8: 10}[P.passes]; war = {4: 3, 8: 7}[P.passes]
                if I.cls == 'mfma':
                    if pw & (set(I.A) | set(I.B)): k = max(k, big)
                    if pw & set(I.C) and not (I.C == P.w and I.passes == P.passes): k = max(k, ov)
                    if pw & set(I.w) and not (I.C == P.w and I.passes == P.passes): k = max(k, ov)
                elif I.cls in ('valu', 'vmem', 'ds'):
                    if pw & rw: k = max(k, big)
                    if I.cls == 'valu' and set(P.C) & ws: k = max(k, war)
            elif P.cls == 'valu':
                vw = {x for x in pw if x[0] in 'va' and x != 'vcc'}
                sw = pw - vw
                isdot = P.op.startswith('v_dot')
                if I.cls == 'mfma':
                    if vw & rs: k = max(k, 3 if isdot else 2)
                    if 'exec' in sw: k = max(k, 4)
                if I.cls == 'valu':
                    if I.op.startswith(('v_readlane', 'v_readfirstlane')) and vw & rs: k = max(k, 1)
                    if I.dpp and vw & rs: k = max(k, 2)
                    if I.op.startswith('v_permlane') and vw & rs: k = max(k, 2)
                    if P.op.startswith(TRANS) and vw & rs: k = max(k, 1)
                    if sw & rs: k = max(k, 4 if I.op.startswith(('v_readlane', 'v_writelane')) else 2)
                    if isdot and vw & rw and not (I.op == P.op and not (vw & set(I.r[:-len(I.w)]))): k = max(k, 3)
                if I.cls in ('vmem', 'ds') and isdot and vw & rw: k = max(k, 3)
                if I.cls == 'vmem' and sw & rs: k = max(k, 5)
                if I.cls == 'salu' and sw & rs: k = max(k, 1)
            elif P.cls == 'vmem':
                if P.wide_store and set(P.wide_store) & ws: k = max(k, 2)
            elif P.cls == 'salu':
                if 'm0' in pw and I.dma: k = max(k, 1)
            need = max(need, k - dist)
        return need
    def __call__(self, text):
        last = None
        for line in text.split("\n"):
            line = line.strip()
            if not line or line.startswith(';'): continue
            if line.endswith(':'):
                self.label(line[:-1]); continue
            last = self.ins(line)
        return last
    def ins(self, text):
        I = parse(text)
        if I.op == 's_waitcnt':
            m = re.search(r'vmcnt\((\d+)\)', text); vm = int(m.group(1)) if m else None
            m = re.search(r'lgkmcnt\((\d+)\)', text); lg = int(m.group(1)) if m else None
            self.wait(vm, lg); return None
        toks = []
        sm = False
        for r in set(I.r) | set(I.w):
            if r in self.pend:
                if self.pend[r][0] == 'sm': sm = True
                else: toks.append(self.pend[r][1])
        if toks: self.wait_tok(*toks)
        if sm: self.wait(lg=0)
        n = self._need(I)
        while n > 0:
            k = min(n, 16)
            self._push(parse(f"s_nop {k-1}")); self.nnop += k; n -= k
        if I.cls == 'vmem' and len(self.vmq) >= 63: self.wait(vm=62)
        self._push(I)
        self.tok += 1
        tok = self.tok
        if I.cls == 'vmem':
            self.vmq.append(tok)
            for r in I.w: self.pend[r] = ('vm', tok)
        elif I.cls == 'ds':
            self.lgq.append(tok)
            for r in I.w: self.pend[r] = ('lg', tok)
        elif I.cls == 'smem':
            self.smem = True
            for r in I.w: self.pend[r] = ('sm', tok)
        return tok
    def snapshot(self):
        return (list(self.vmq), list(self.lgq), self.smem, dict(self.pend), list(self.hist), self.pos)
    def restore(self, s):
        self.vmq, self.lgq, self.smem, self.pend, self.hist, self.pos = list(s[0]), list(s[1]), s[2], dict(s[3]), list(s[4]), s[5]
    def text(self):
        return "\n".join(self.out) + "\n"
```

```python
import sys
from asmlib import NAME
from emit import Emit

WS_A2   = 0x100000
WS_G    = 0x0
WS_E    = 0x4000
WS_FH   = 0x8000
WS_FKV  = 0x10000
WS_ZP   = 0x20000
WS_KVP  = 0x40000
WS_STAMP = 0x8000000
WS_SIZE = 0x10000000
XBASE = 65536
S0 = 131072
S1 = 147456
LSLOT = [S0, XBASE, XBASE + 16384, XBASE + 32768, XBASE + 49152, 0, 16384, 32768, 49152]
OOB = 0x40000000

vL16, vOne = 0, 1
vW, vX, vB = 2, 6, 10
vWr, vWr3 = 14, 15
vXr = 16
vBr = 24
vTag = 30
vFrag = 32
ACC0, ACC1 = 64, 128
TMP = 192
sX, sW, sWS, sBd, sBo, sOUT, sDBG, sGW = 28, 32, 36, 40, 44, 48, 52, 56
sW_, sROT = 26, 27
sMASK, sTAG = 60, 62
sM0X, sM0W = 64, 65
sT0, sT1, sCOL, sKS = 66, 67, 68, 69
sA0, sA1 = 70, 71
sFH, sFKVp, sFKVc, sKVP, sZP = 72, 73, 74, 75, 76
sRB, sRG, sRR, sMH, sNH = 77, 78, 79, 80, 81
sT2, sT3 = 3, 11
sA2C = 10
STAMP0 = 82

def srd(n): return f"s[{n}:{n+3}]"
def v4(n, c='v'): return f"{c}[{n}:{n+3}]"
def v2(n, c='v'): return f"{c}[{n}:{n+1}]"
def v16(n): return f"v[{n}:{n+15}]"
MF = "v_mfma_f32_32x32x16_bf16"

class Cfg:
    stamps = False
    rot = 1
    codepf = True
    xflags = ""
    wflags = ""
    bflags = ""
    look = 7
    fillmax = 5
    npre = 2
    kvrate = 2
    kvdrain = 24
    kvpoll = 16

class Gen:
    def __init__(self, cfg):
        self.c = cfg
        self.e = Emit()
        self.slow = []
        self.nst = 0
    def stamp(self, i):
        if self.c.stamps:
            self.e(f"s_memrealtime s[{STAMP0+2*i}:{STAMP0+2*i+1}]")
    def prologue(self):
        e = self.e; c = self.c
        e(f"""
        s_cmp_ge_u32 s2, 256
        s_cbranch_scc1 L_end
        s_load_dwordx16 s[4:19], s[0:1], 0
        s_load_dwordx4 s[20:23], s[0:1], 64
        s_load_dwordx2 s[24:25], s[0:1], 80
        """)
        self.stamp(0)
        e(f"""
        v_lshrrev_b32 v40, 6, v0
        v_and_b32 v41, 63, v0
        v_readfirstlane_b32 s{sW_}, v40
        s_and_b32 s{sT0}, s2, 1
        s_lshl_b32 s{sT0}, s{sT0}, 3
        s_bfe_u32 s{sT1}, s2, 0x30003
        s_add_u32 s{sRB}, s{sT0}, s{sT1}
        s_bfe_u32 s{sRG}, s2, 0x20001
        s_lshr_b32 s{sRR}, s2, 6
        s_lshr_b32 s{sMH}, s{sW_}, 1
        s_and_b32 s{sNH}, s{sW_}, 1
        """)
        if c.rot == 0:
            e(f"s_mov_b32 s{sROT}, 0")
        elif c.rot == 1:
            e(f"""
            s_lshr_b32 s{sT0}, s{sT0}, 1
            s_lshl1_add_u32 s{sROT}, s{sRG}, s{sT0}
            """)
        else:
            e(f"""
            s_lshl2_add_u32 s{sT0}, s{sRG}, s{sRR}
            s_add_u32 s{sROT}, s{sT0}, s{sRB}
            """)
        e(f"""
        v_lshrrev_b32 v42, 3, v41
        v_and_b32 v43, 7, v41
        v_lshrrev_b32 v44, 4, v41
        s_lshl_b32 s{sM0W}, s{sW_}, 12
        s_add_u32 s{sM0X}, s{sM0W}, {XBASE}
        s_lshl_b32 s{sT0}, s{sRB}, 7
        s_lshl_b32 s{sT1}, s{sW_}, 5
        s_add_u32 s{sT0}, s{sT0}, s{sT1}
        v_add_u32 v45, s{sT0}, v42
        v_lshlrev_b32 v45, 10, v45
        v_xor_b32 v46, v43, v44
        v_lshl_add_u32 v{vX}, v46, 4, v45
        v_xor_b32 v46, 4, v46
        v_lshl_add_u32 v{vX+1}, v46, 4, v45
        v_add_u32 v{vX+2}, {2*7168}, v{vX}
        v_add_u32 v{vX+3}, {3*7168}, v{vX+1}
        v_add_u32 v{vX+1}, 7168, v{vX+1}
        v_and_b32 v46, 1, v44
        v_lshlrev_b32 v46, 2, v46
        v_xor_b32 v47, v43, v46
        v_lshlrev_b32 v47, 4, v47
        ; v48 = 32*nh + (l>>3)
        s_lshl_b32 s{sT0}, s{sNH}, 5
        v_add_u32 v48, s{sT0}, v42
        """)
        e(f"v_mov_b32 v{TMP+62}, v47")
        e(f"v_mov_b32 v{TMP+63}, v48")
        e(f"""
        s_mov_b32 s{sX+2}, {2048*512*2}
        s_mov_b32 s{sX+3}, 0x20000
        s_mov_b32 s{sW+3}, 0x20000
        s_waitcnt lgkmcnt(0)
        s_load_dwordx2 s[{sTAG}:{sTAG+1}], s[24:25], {WS_E}
        s_mov_b32 s{sX}, s4
        s_and_b32 s{sX+1}, s5, 0xffff
        s_cmp_ge_u32 s{sRR}, 2
        s_cbranch_scc1 L_typeF
        """)
    def w_setup(self, kind, ty):
        L = []
        if kind in ('kv', 'q'):
            stride = 3072
            L += [f"s_mov_b32 s{sW}, s6", f"s_and_b32 s{sW+1}, s7, 0xffff", f"s_mov_b32 s{sW+2}, {512*1536*2}"]
            L += [f"s_lshl1_add_u32 s{sCOL}, s{sRG}, s{sRR}", f"s_lshl_b32 s{sCOL}, s{sCOL}, 7"]
            if kind == 'kv':
                L += [f"s_add_u32 s{sT2}, s{sMH}, 1", f"s_lshl_b32 s{sT2}, s{sT2}, 10", f"s_add_u32 s{sCOL}, s{sCOL}, s{sT2}"]
        else:
            stride = 3584
            L += [f"s_cmp_eq_u32 s{sMH}, 0", f"s_cselect_b32 s{sW}, s12, s14", f"s_cselect_b32 s{sW+1}, s13, s15",
                  f"s_and_b32 s{sW+1}, s{sW+1}, 0xffff", f"s_mov_b32 s{sW+2}, {512*1792*2}"]
            L += [f"s_mul_i32 s{sCOL}, s{sRG}, {7*128}"]
            if kind == 'guA':
                L += [f"s_lshl_b32 s{sT2}, s{sRR}, 7", f"s_add_u32 s{sCOL}, s{sCOL}, s{sT2}"]
            elif kind in ('gu1', 'gu2'):
                L += [f"s_lshl_b32 s{sT2}, s{sRR}, 8", f"s_add_u32 s{sCOL}, s{sCOL}, s{sT2}",
                      f"s_sub_u32 s{sCOL}, s{sCOL}, {256 if kind == 'gu1' else 128}"]
            else:
                L += [f"s_lshl_b32 s{sT2}, s{sRR}, 6", f"s_add_u32 s{sCOL}, s{sCOL}, s{sT2}",
                      f"s_add_u32 s{sCOL}, s{sCOL}, {6*128-128}"]
        L += [f"s_mov_b32 s{sKS}, {64*stride}"]
        if kind == 'gu2':
            return L
        if kind == 'gu3':
            L += [f"v_lshrrev_b32 v{vW+1}, 6, v{vL16}", f"v_and_b32 v{vW+2}, 0x30, v{vL16}",
                  f"v_mul_u32_u24 v{vW+1}, {stride}, v{vW+1}", f"v_add_u32 v{vW}, v{vW+1}, v{vW+2}"]
            d = 16 * stride - 1024
        else:
            L += [f"v_mul_u32_u24 v{vW+1}, {stride}, v{TMP+63}", f"v_add_u32 v{vW}, v{vW+1}, v{TMP+62}"]
            d = 8 * stride - 1024
        L += [f"v_add_u32 v{vW+i}, {i*d}, v{vW}" for i in (1, 2, 3)]
        return L
    def dma_w(self, G, ty):
        slot = G % 4
        if G < 16:
            pre = [f"s_add_u32 s{sT1}, s{sROT}, {G % 8}"]
        else:
            T = G - 16
            pre = [f"s_add_u32 s{sT1}, s{sROT}, s{sMH if ty == 'A' else sNH}", f"s_add_u32 s{sT1}, s{sT1}, {2*T}"]
        pre = [f"s_add_u32 m0, s{sM0W}, {slot*16384}"] + pre
        pre += [f"s_and_b32 s{sT1}, s{sT1}, 7", f"s_mul_i32 s{sT1}, s{sT1}, s{sKS}", f"s_add_u32 s{sT1}, s{sT1}, s{sCOL}"]
        return [(pre if i == 0 else [], f"buffer_load_dwordx4 v{vW+i}, {srd(sW)}, s{sT1} offen offset:{1024*i} {self.c.wflags} lds") for i in range(4)]
    def dma_x(self, G):
        slot = G % 4
        pre = [f"s_add_u32 m0, s{sM0X}, {slot*16384}",
               f"s_add_u32 s{sT0}, s{sROT}, {G}", f"s_and_b32 s{sT0}, s{sT0}, 7", f"s_lshl_b32 s{sT0}, s{sT0}, 7"]
        return [(pre if i == 0 else [], f"buffer_load_dwordx4 v{vX+i}, {srd(sX)}, s{sT0} offen offset:{1024*i} {self.c.xflags} lds") for i in range(4)]
    def dma_b(self, pc):
        base = LSLOT[pc % 9]
        if pc < 14:
            pre = [f"s_mul_i32 s{sT0}, s{sW_}, {448*1024}", f"s_add_u32 s{sT0}, s{sT0}, {pc*32*1024}"]; s = sBd
        else:
            pre = [f"s_lshl_b32 s{sT0}, s{sW_}, 17", f"s_add_u32 s{sT0}, s{sT0}, {(pc-14)*32*1024}"]; s = sBo
        pre = [f"s_add_u32 m0, s{sM0W}, {base}"] + pre
        return [(pre if i == 0 else [], f"buffer_load_dwordx4 v{vB+i}, {srd(s)}, s{sT0} offen offset:{1024*i} {self.c.bflags} lds") for i in range(4)]
    def b_read(self, pc, s2, nt, i, dst):
        base = LSLOT[pc % 9]; rng = base // 65536
        return f"ds_read_b64_tr_b16 {dst}, v{vBr + 2*rng + nt} offset:{base % 65536 + s2*2048 + i*1024}"
    def b_transfer(self, pc):
        L = []
        for s2 in range(2):
            for nt in range(2):
                for i in range(2):
                    L.append(self.b_read(pc, s2, nt, i, v2(16*pc + 8*s2 + 4*nt + 2*i, 'a')))
        return L
    def setup2(self, ty):
        e = self.e; c = self.c
        e(f"""
        s_mov_b32 s{sWS}, s24
        s_and_b32 s{sWS+1}, s25, 0xffff
        s_mov_b32 s{sWS+2}, {WS_SIZE}
        s_mov_b32 s{sWS+3}, 0x20000
        s_mov_b32 s{sBd}, s16
        s_and_b32 s{sBd+1}, s17, 0xffff
        s_mov_b32 s{sBd+2}, {1792*512*2}
        s_mov_b32 s{sBd+3}, 0x20000
        s_mov_b32 s{sBo}, s8
        s_and_b32 s{sBo+1}, s9, 0xffff
        s_mov_b32 s{sBo+2}, {512*512*2}
        s_mov_b32 s{sBo+3}, 0x20000
        s_mov_b32 s{sOUT}, s20
        s_and_b32 s{sOUT+1}, s21, 0xffff
        s_mov_b32 s{sOUT+2}, {2048*512*2}
        s_mov_b32 s{sOUT+3}, 0x20000
        s_mov_b32 s{sDBG}, s22
        s_and_b32 s{sDBG+1}, s23, 0xffff
        s_mov_b32 s{sDBG+2}, 256
        s_mov_b32 s{sDBG+3}, 0x20000
        s_mov_b32 s{sGW}, s18
        s_and_b32 s{sGW+1}, s19, 0xffff
        s_mov_b32 s{sGW+2}, 1024
        s_mov_b32 s{sGW+3}, 0x20000
        s_mov_b32 s{sMASK}, 0xffff0000
        s_mov_b32 s{sMASK+1}, 0xffff0000
        v_lshlrev_b32 v{vL16}, 4, v41
        v_cmp_eq_u32 vcc, 0, v41
        v_mov_b32 v49, {OOB}
        v_cndmask_b32 v{vOne}, v49, 0, vcc
        v_lshrrev_b32 v50, 5, v41
        v_and_b32 v51, 1, v44
        v_bfe_u32 v52, v41, 2, 2
        v_and_b32 v53, 3, v41
        v_lshlrev_b32 v54, 5, v51
        v_lshl_add_u32 v54, v53, 3, v54        ; cg*32 + c*8
        v_lshl_add_u32 v55, v50, 3, v52        ; 8hh + r
        v_lshl_add_u32 v{vWr3}, v55, 6, v54
        v_lshrrev_b32 v56, 1, v52              ; r>>1
        v_xor_b32 v57, s{sNH}, v56
        v_lshl_add_u32 v57, v57, 6, v54
        v_lshl_add_u32 v{vWr}, v55, 7, v57
        v_lshl_add_u32 v55, v50, 2, v52        ; 4hh + r
        v_lshl_add_u32 v55, v55, 7, v54
        v_add_u32 v55, s{sM0W}, v55
        v_lshl_add_u32 v{vBr}, v56, 6, v55
        v_xor_b32 v{vBr+1}, 64, v{vBr}
        v_add_u32 v{vBr+2}, 0x10000, v{vBr}
        v_add_u32 v{vBr+3}, 0x10000, v{vBr+1}
        v_add_u32 v{vBr+4}, 0x20000, v{vBr}
        v_add_u32 v{vBr+5}, 0x20000, v{vBr+1}
        s_bfe_u32 s{sT0}, s2, 0x30003
        s_lshl_b32 s{sT0}, s{sT0}, 7
        v_lshl_add_u32 v55, v42, 10, v47
        v_add_u32 v{vB}, s{sT0}, v55
        v_add_u32 v{vB+1}, 7168, v{vB}
        v_add_u32 v{vB+2}, {2*7168}, v{vB}
        v_add_u32 v{vB+3}, {3*7168}, v{vB}
        v_and_b32 v55, 31, v41
        v_bfe_u32 v56, v41, 1, 3
        v_xor_b32 v56, v56, v50
        v_lshlrev_b32 v55, 7, v55
        v_lshl_add_u32 v55, v56, 4, v55
        v_add_u32 v{vXr}, s{sM0X}, v55
        v_xor_b32 v{vXr+1}, 32, v{vXr}
        v_xor_b32 v{vXr+2}, 64, v{vXr}
        v_xor_b32 v{vXr+3}, 96, v{vXr}
        v_xor_b32 v{vXr+4}, 0x1000, v{vXr}
        v_xor_b32 v{vXr+5}, 0x1000, v{vXr+1}
        v_xor_b32 v{vXr+6}, 0x1000, v{vXr+2}
        v_xor_b32 v{vXr+7}, 0x1000, v{vXr+3}
        s_lshl1_add_u32 s{sT0}, s{sRB}, s{sMH}
        s_lshl2_add_u32 s{sT1}, s{sT0}, s{sRG}       ; rt64*4+rg
        s_mul_i32 s{sA0}, s{sT1}, {36*2048}
        s_lshl_b32 s{sT2}, s{sNH}, 10
        s_add_u32 s{sA0}, s{sA0}, s{sT2}
        s_add_u32 s{sA0}, s{sA0}, {WS_A2}
        s_xor_b32 s{sA1}, s{sA0}, 1024
        ; producer h flag offset (early); late = +128
        s_lshl_b32 s{sFH}, s{sT1}, 8
        s_lshl1_add_u32 s{sT2}, s{sRR}, s{sNH}
        s_lshl3_add_u32 s{sFH}, s{sT2}, s{sFH}
        s_add_u32 s{sFH}, s{sFH}, {WS_FH}
        s_and_b32 s{sT0}, s2, 7
        s_lshl2_add_u32 s{sT3}, s{sT0}, s{sRR}       ; rt
        s_lshl2_add_u32 s{sT0}, s{sT3}, s{sW_}       ; rt*4 + w
        s_mul_i32 s{sA2C}, s{sT0}, {36*2048}
        s_add_u32 s{sA2C}, s{sA2C}, {WS_A2}
        """)
        if ty == 'A':
            e(f"""
            s_lshl1_add_u32 s{sT0}, s{sRG}, s{sRR}       ; j
            s_lshl1_add_u32 s{sT0}, s{sT0}, s{sNH}       ; j*2+nh
            s_lshl_b32 s{sFKVc}, s{sT0}, 8
            s_add_u32 s{sFKVc}, s{sFKVc}, {WS_FKV}
            s_lshl1_add_u32 s{sT1}, s{sRB}, s{sMH}
            s_lshl3_add_u32 s{sFKVp}, s{sT1}, s{sFKVc}
            s_lshl_b32 s{sT1}, s{sMH}, 7
            s_add_u32 s{sFKVc}, s{sFKVc}, s{sT1}
            s_lshl_b32 s{sKVP}, s{sT0}, 15
            s_add_u32 s{sKVP}, s{sKVP}, {WS_KVP}
            s_lshl_b32 s{sZP}, s{sT0}, 11
            s_add_u32 s{sZP}, s{sZP}, {WS_ZP}
            """)
    def epoch(self):
        e = self.e
        e(f"""
        s_or_b32 s{sT0}, s2, s{sW_}
        s_cmp_eq_u32 s{sT0}, 0
        s_cselect_b32 s{sT0}, 0, {OOB}
        s_add_u32 s{sT1}, s{sT0}, {WS_E}
        s_add_u32 s{sTAG}, s{sTAG}, 0x9e3779b9
        s_add_u32 s{sTAG+1}, s{sTAG+1}, 0x7f4a7c16
        s_or_b32 s{sTAG+1}, s{sTAG+1}, 1
        v_mov_b32 v{vTag}, s{sTAG}
        v_mov_b32 v{vTag+1}, s{sTAG+1}
        buffer_store_dwordx2 {v2(vTag)}, v{vOne}, {srd(sDBG)}, s{sT0} offen sc1
        buffer_store_dwordx2 {v2(vTag)}, v{vOne}, {srd(sWS)}, s{sT1} offen sc1
        """)
    def poll_check(self, name, load, cmp_ins, okcmp):
        e = self.e
        for t in cmp_ins: e(t)
        e(okcmp)
        e(f"s_cbranch_scc0 L_slow_{name}")
        e.label(f"L_back_{name}")
        s = [f"L_slow_{name}:", f"    s_mov_b32 s{sT2}, 0", f"L_spin_{name}:", "    s_nop 4", "    " + load, "    s_waitcnt vmcnt(0)"]
        for t in cmp_ins: s += ["    " + t, "    s_nop 4"]
        s += ["    " + okcmp, f"    s_cbranch_scc1 L_back_{name}", f"    s_add_u32 s{sT2}, s{sT2}, 1",
              f"    s_cmp_lt_u32 s{sT2}, 0x40000", f"    s_cbranch_scc1 L_spin_{name}", f"    s_branch L_back_{name}"]
        self.slow += s
    def ep_tag(self, ty):
        load = f"buffer_load_dwordx2 {v2(vTag)}, off, {srd(sDBG)}, 0 sc1"
        st = {}
        def chk():
            self.poll_check("tag" + ty, load, [f"v_readfirstlane_b32 s{sTAG}, v{vTag}", f"v_readfirstlane_b32 s{sTAG+1}, v{vTag+1}"],
                            f"s_cmp_lg_u32 s{sTAG+1}, 0")
        return [('tok', st, load), ('vm', st), chk]
    def ep_gu(self, acc, rhos, idx_ins, toks):
        L = []
        n = len(rhos)
        for rho in rhos:
            for fi in range(2):
                g = acc + 16*rho + 8*fi; u = acc + 16*n + 16*rho + 8*fi
                for k in range(0, 8, 2):
                    L += [f"v_max_f32 v{g+k}, 0, v{g+k}", f"v_max_f32 v{g+k+1}, 0, v{g+k+1}",
                          f"v_mul_f32 v{g+k}, v{g+k}, v{u+k}", f"v_mul_f32 v{g+k+1}, v{g+k+1}, v{u+k+1}",
                          f"v_cvt_pk_bf16_f32 v{g+k//2}, v{g+k}, v{g+k+1}"]
                st = {}
                L.append(('grp', idx_ins + [f"s_add_u32 s{sT2}, s{sT2}, s{sA0+rho}"], st,
                          f"buffer_store_dwordx4 {v4(g)}, v{vL16}, {srd(sWS)}, s{sT2} offen offset:{2048*fi} sc1"))
                toks.append(st)
        return L
    def phi(self, regs, t0):
        L = []
        for k in range(0, len(regs), 2):
            a, b = regs[k], regs[k+1]
            ta, tb = t0 + (k % 4), t0 + (k % 4) + 1
            L += [f"v_mul_f32 v{ta}, 0x3fb8aa3b, v{a}", f"v_mul_f32 v{tb}, 0x3fb8aa3b, v{b}",
                  f"v_exp_f32 v{ta}, v{ta} clamp", f"v_max_f32 v{a}, 0x358637bd, v{a}",
                  f"v_exp_f32 v{tb}, v{tb} clamp", f"v_max_f32 v{b}, 0x358637bd, v{b}",
                  f"v_add_f32 v{a}, v{a}, v{ta}", f"v_add_f32 v{b}, v{b}, v{tb}",
                  f"v_cvt_pk_bf16_f32 v{regs[0] + k//2}, v{a}, v{b}"]
        return L
    def ep_kv(self):
        L = []
        Dv, Dz, ones, t0 = TMP, TMP + 16, TMP + 32, TMP + 36
        L += [f"v_mov_b32 v{ones+i}, 0x3f803f80" for i in range(4)]
        first = True
        for rho in range(2):
            for fi in range(2):
                k = ACC0 + 16*rho + 8*fi; v = ACC0 + 32 + 16*rho + 8*fi
                L += [f"v_cvt_pk_bf16_f32 v{v+i}, v{v+2*i}, v{v+2*i+1}" for i in range(4)]
                L += self.phi(list(range(k, k+8)), t0)
                L += [('skip', 1)]
                L += [f"{MF} {v16(Dv)}, {v4(k)}, {v4(v)}, {'0' if first else v16(Dv)}",
                      f"{MF} {v16(Dz)}, {v4(ones)}, {v4(k)}, {'0' if first else v16(Dz)}"]
                first = False
        a = TMP + 40
        L += [f"v_add_u32 v{a}, s{sM0W}, v{vL16}", f"v_add_u32 v{a}, {S1}, v{a}",
              f"v_lshrrev_b32 v{a+1}, 2, v{vL16}", f"v_add_u32 v{a+2}, s{sM0W}, v{a+1}", f"v_add_u32 v{a+2}, {S1+2048}, v{a+2}",
              ('grp', [f"s_lshl_b32 s{sT2}, s{sNH}, 12", f"s_add_u32 s{sT2}, s{sT2}, {S1+2048}"], {}, f"v_add_u32 v{a+4}, s{sT2}, v{a+1}"),
              ('grp', [f"s_lshl2_add_u32 s{sT2}, s{sNH}, s{sMH}", f"s_lshl_b32 s{sT2}, s{sT2}, 10", f"s_add_u32 s{sT2}, s{sT2}, {S1}"], {},
               f"v_add_u32 v{a+3}, s{sT2}, v{vL16}"),
              f"v_and_b32 v{a+5}, 0x7f, v{a+1}",
              ('skip', 2)]
        L += [f"v_cndmask_b32 v{Dv+i}, v{Dv+i}, v{Dv+8+i}, s[{sMASK}:{sMASK+1}]" for i in range(8)]
        L += [f"ds_write_b128 v{a}, {v4(Dv)}", f"ds_write_b128 v{a}, {v4(Dv+4)} offset:1024", f"ds_write_b32 v{a+2}, v{Dz}", ('bar',)]
        L += [f"ds_read_b128 {v4(Dv)}, v{a+3}", f"ds_read_b128 {v4(Dv+4)}, v{a+3} offset:8192",
              f"ds_read_b32 v{Dz}, v{a+4}", f"ds_read_b32 v{Dz+1}, v{a+4} offset:8192", ('skip', 4)]
        L += [f"v_add_f32 v{Dv+i}, v{Dv+i}, v{Dv+4+i}" for i in range(4)] + [f"v_add_f32 v{Dz}, v{Dz}, v{Dz+1}"]
        st = {}
        L += [('grp', [f"s_lshl1_add_u32 s{sT2}, s{sRB}, s{sMH}", f"s_lshl_b32 s{sT2}, s{sT2}, 10", f"s_add_u32 s{sT2}, s{sT2}, s{sKVP}"], {},
               f"buffer_store_dwordx4 {v4(Dv)}, v{vL16}, {srd(sWS)}, s{sT2} offen sc1"),
              ('grp', [f"s_lshl_b32 s{sT2}, s{sRB}, 7", f"s_add_u32 s{sT2}, s{sT2}, s{sZP}"], st,
               f"buffer_store_dword v{Dz}, v{a+5}, {srd(sWS)}, s{sT2} offen sc1")]
        return L, st
    def ep_g(self, toks):
        xa, xb, gw, a0 = TMP + 48, TMP + 52, TMP + 56, TMP + 46
        st = {}
        row = [f"s_lshl2_add_u32 s{sT2}, s{sRG}, s{sRR}", f"s_lshl1_add_u32 s{sT2}, s{sT2}, s{sNH}",
               f"s_lshl1_add_u32 vcc_lo, s{sRB}, s{sMH}", f"s_lshl_b32 vcc_lo, vcc_lo, 6", f"s_lshl1_add_u32 s{sT2}, s{sT2}, vcc_lo"]
        L = [f"buffer_load_dwordx4 {v4(gw)}, v{vL16}, {srd(sGW)}, 0 offen",
             ('grp', row + [f"s_lshl_b32 s{sT2}, s{sT2}, 10", f"buffer_load_dwordx4 {v4(xa)}, v{vL16}, {srd(sX)}, s{sT2} offen"], st,
              f"buffer_load_dwordx4 {v4(xb)}, v{vL16}, {srd(sX)}, s{sT2} offen offset:1024"),
             f"v_mov_b32 v{a0}, 0", f"v_mov_b32 v{a0+1}, 0", ('vm', st)]
        for i in range(4):
            L += [f"v_dot2c_f32_bf16 v{a0}, v{xa+i}, v{gw+i}", f"v_dot2c_f32_bf16 v{a0+1}, v{xb+i}, v{gw+i}"]
        L += [('skip', 1)]
        for mod in ("row_shr:1 row_mask:0xf bank_mask:0xf bound_ctrl:0", "row_shr:2 row_mask:0xf bank_mask:0xf bound_ctrl:0",
                    "row_shr:4 row_mask:0xf bank_mask:0xf bound_ctrl:0", "row_shr:8 row_mask:0xf bank_mask:0xf bound_ctrl:0",
                    "row_bcast:15 row_mask:0xa bank_mask:0xf", "row_bcast:31 row_mask:0xc bank_mask:0xf"):
            L += [f"v_add_f32_dpp v{a0}, v{a0}, v{a0} {mod}", f"v_add_f32_dpp v{a0+1}, v{a0+1}, v{a0+1} {mod}", ('skip', 1)]
        L += [f"v_mul_f32 v{a0}, 0xbfb8aa3b, v{a0}", f"v_mul_f32 v{a0+1}, 0xbfb8aa3b, v{a0+1}",
              f"v_exp_f32 v{a0}, v{a0}", f"v_exp_f32 v{a0+1}, v{a0+1}",
              f"v_cmp_eq_u32 vcc, {63*16}, v{vL16}", f"v_mov_b32 v{xa}, {OOB}",
              f"v_add_f32 v{a0}, 1.0, v{a0}", f"v_add_f32 v{a0+1}, 1.0, v{a0+1}",
              f"v_cndmask_b32 v{xa}, v{xa}, 0, vcc",
              f"v_rcp_f32 v{a0}, v{a0}", f"v_rcp_f32 v{a0+1}, v{a0+1}", ('skip', 1)]
        st2 = {}
        L += [('grp', row + [f"s_lshl_b32 s{sT2}, s{sT2}, 2"], st2,
               f"buffer_store_dwordx2 {v2(a0)}, v{xa}, {srd(sWS)}, s{sT2} offen offset:{WS_G} sc1")]
        toks.append(st2)
        return L
    def flag_store(self, sreg, off=0):
        return f"buffer_store_dwordx2 {v2(vTag)}, v{vOne}, {srd(sWS)}, s{sreg} offen offset:{off} sc1"
    def ep_kvc(self):
        L = []
        p = TMP + 60; fo = TMP + 59
        load = f"buffer_load_dwordx2 {v2(p)}, v{fo}, {srd(sWS)}, s{sFKVc} offen sc1"
        st = {}
        def chk():
            self.poll_check("kv", load, [f"v_cmp_eq_u64 vcc, s[{sTAG}:{sTAG+1}], {v2(p)}"], "s_cmp_eq_u64 vcc, -1")
        L += [f"v_lshrrev_b32 v{fo}, 1, v{vL16}", f"v_and_b32 v{fo}, 0x78, v{fo}", ('tok', st, load), ('skip', 10), chk]
        land = [ACC0 + 32 + 4*i for i in range(8)] + [TMP + 4*i for i in range(8)]
        zl = TMP + 32
        a = TMP + 40
        L += [('grp', [f"s_lshl_b32 s{sT2}, s{sMH}, 10", f"s_add_u32 s{sZP}, s{sZP}, s{sT2}", f"s_lshl_b32 s{sT2}, s{sMH}, 14"], {},
               f"s_add_u32 s{sKVP}, s{sKVP}, s{sT2}")]
        for i in range(16):
            if i and i % 4 == 0: L.append(f"s_add_u32 s{sKVP}, s{sKVP}, 4096")
            L += [f"buffer_load_dwordx4 {v4(land[i])}, v{vL16}, {srd(sWS)}, s{sKVP} offen offset:{1024*(i%4)} sc1", ('skip', 1)]
        for i in range(4):
            L += [f"buffer_load_dword v{zl+i}, v{a+1}, {srd(sWS)}, s{sZP} offen offset:{256*i} sc1"]
        L += [('skip', 6)]
        S = land[0]
        for i in range(1, 8):
            for h in range(2):
                L += [f"v_add_f32 v{S+4*h+k}, v{S+4*h+k}, v{land[2*i+h]+k}" for k in range(4)]
        L += [f"v_add_f32 v{zl}, v{zl}, v{zl+1}", f"v_add_f32 v{zl+2}, v{zl+2}, v{zl+3}", f"v_add_f32 v{zl}, v{zl}, v{zl+2}",
              f"v_mov_b32 v{zl+1}, v{zl}",
              f"ds_write_b128 v{a}, {v4(S)}", f"ds_write_b128 v{a}, {v4(S+4)} offset:1024",
              f"v_permlane32_swap_b32 v{zl}, v{zl+1}",
              f"v_xor_b32 v{a+3}, 0x2000, v{a}",
              f"v_add_f32 v{zl}, v{zl}, v{zl+1}",
              f"ds_write_b32 v{a+2}, v{zl}",
              f"v_lshrrev_b32 v{a+5}, 2, v{vL16}", f"v_and_b32 v{a+5}, 64, v{a+5}", f"v_xor_b32 v{a+5}, 64, v{a+5}",
              f"v_lshrrev_b32 v{a+4}, 5, v{vL16}", f"v_and_b32 v{a+4}, 16, v{a+4}",
              ('grp', [f"s_lshl_b32 s{sT2}, s{sNH}, 12", f"s_add_u32 s{sT2}, s{sT2}, {S1+2048}"], {}, f"v_add3_u32 v{a+4}, v{a+4}, v{a+5}, s{sT2}"),
              ('bar',)]
        O = TMP + 8; Z = TMP + 16
        L += [f"ds_read_b128 {v4(O)}, v{a+3}", f"ds_read_b128 {v4(O+4)}, v{a+3} offset:1024",
              f"ds_read_b128 {v4(Z)}, v{a+4}", f"ds_read_b128 {v4(Z+4)}, v{a+4} offset:32",
              f"ds_read_b128 {v4(Z+8)}, v{a+4} offset:8192", f"ds_read_b128 {v4(Z+12)}, v{a+4} offset:8224"]
        M = [f"v_add_f32 v{S+k}, v{S+k}, v{O+k}" for k in range(8)] + [f"v_add_f32 v{Z+k}, v{Z+k}, v{Z+8+k}" for k in range(8)]
        M += [f"v_cvt_pk_bf16_f32 v{S+k}, v{S+2*k}, v{S+2*k+1}" for k in range(4)]
        M += [f"v_cvt_pk_bf16_f32 v{Z+k}, v{Z+2*k}, v{Z+2*k+1}" for k in range(4)]
        M += [f"v_cndmask_b32 v{TMP+k}, v{S+k}, v{Z+k}, s[{sMASK}:{sMASK+1}]" for k in range(4)]
        M += [f"v_cndmask_b32 v{TMP+4+k}, v{Z+k}, v{S+k}, s[{sMASK}:{sMASK+1}]" for k in range(4)]
        return L, M
    def ep_q(self, M, toks):
        L = []
        t0 = TMP + 36
        def fin(rho, hd):
            N = ACC1 + 16*(2*rho + hd); num = N + 8*hd; den = N + 8*(1-hd)
            X = [f"v_add_f32 v{den}, 0x358637bd, v{den}", f"v_rcp_f32 v{den}, v{den}",
                 f"s_lshl1_add_u32 s{sT2}, s{sRR}, s{sNH}", f"s_lshl_b32 s{sT2}, s{sT2}, 12"]
            X += [f"v_mul_f32 v{num+k}, v{num+k}, v{den}" for k in range(8)]
            X += [f"v_cvt_pk_bf16_f32 v{num+k}, v{num+2*k}, v{num+2*k+1}" for k in range(4)]
            st = {}
            X = X[:2] + X[4:] + [('grp', X[2:4] + [f"s_add_u32 s{sT2}, s{sT2}, s{sA0+rho}", f"s_add_u32 s{sT2}, s{sT2}, {28*2048}"], st,
                   f"buffer_store_dwordx4 {v4(num)}, v{vL16}, {srd(sWS)}, s{sT2} offen offset:{2048*hd} sc1")]
            toks.append(st)
            return X
        order = [(0, 0), (0, 1), (1, 0), (1, 1)]
        L += M
        prev = None
        for rho, hd in order:
            q = ACC0 + 16*rho + 8*hd
            L += self.phi(list(range(q, q+8)), t0)
            if prev: L += fin(*prev)
            L += [f"{MF} {v16(ACC1 + 16*(2*rho+hd))}, {v4(TMP+4*hd)}, {v4(q)}, 0"]
            prev = (rho, hd)
        L += fin(*prev)
        return L
    def pop_fill(self, q, budget, force=False):
        e = self.e
        while q and budget > 0:
            it = q[0]
            if isinstance(it, str):
                e(it); q.pop(0); budget -= (2 if it.startswith(('v_exp', 'v_rcp')) else 1)
                if it.startswith(MF): budget += 3
            elif callable(it):
                it(); q.pop(0); budget -= 4
            elif it[0] == 'tok':
                it[1]['t'] = e(it[2]); q.pop(0); budget -= 1
            elif it[0] == 'grp':
                for t in it[1]: e(t)
                it[2]['t'] = e(it[3]); q.pop(0); budget -= 1 + len(it[1])
            elif it[0] == 'skip':
                if force: q.pop(0); continue
                if it[1] <= 1: q.pop(0)
                else: q[0] = ('skip', it[1] - 1)
                return
            elif it[0] == 'vm':
                if force: e.wait_tok(it[1]['t'])
                if e.vm_done(it[1]['t']): q.pop(0)
                else: return
            elif it[0] == 'lg':
                e.wait_tok(it[1]['t']); q.pop(0)
            elif it[0] == 'bar':
                if force:
                    e.wait(lg=0); e("s_barrier"); q.pop(0); continue
                return
            elif it[0] == 'rate':
                self.extra = it[1]; q.pop(0)
            elif it[0] == 'mark':
                self.marks.add(it[1]); q.pop(0); e.comment(f"mark {it[1]} stage {self.G}")
            elif it[0] == 'after':
                if it[1] in self.marks: q.pop(0)
                elif force: raise ValueError("order")
                else: return
            elif it[0] == 'at':
                if force or self.G >= it[1]: q.pop(0)
                else: return
            else:
                raise ValueError(it)
    def stage_steps(self, G, ty):
        slot = G % 4
        steps = []
        def xa(t, s, rho): return v4(32*t + 8*s + 4*rho, 'a')
        for s in range(4):
            fb = vFrag + 16 * (s & 1)
            reads = []; mf = []
            if G < 16:
                t = G % 8
                acc = ACC0 if G < 8 else ACC1
                wr = [[f"ds_read_b64_tr_b16 {v2(fb+4*u+2*i)}, v{vWr} offset:{slot*16384+u*8192+s*2048+i*512}" for i in range(2)] for u in range(2)]
                if G < 8:
                    xr = [f"ds_read_b128 {xa(t, s, rho)}, v{vXr+4*rho+s} offset:{slot*16384}" for rho in range(2)]
                    reads = wr[0] + [xr[0], xr[1]] + wr[1]
                else:
                    reads = wr[0] + wr[1]
                for u in range(2):
                    for rho in range(2):
                        d = acc + 32*u + 16*rho
                        c = '0' if (t == 0 and s == 0) else v16(d)
                        if ty == 'A' and G < 8: mf.append(f"{MF} {v16(d)}, {xa(t,s,rho)}, {v4(fb+4*u)}, {c}")
                        else: mf.append(f"{MF} {v16(d)}, {v4(fb+4*u)}, {xa(t,s,rho)}, {c}")
            else:
                T = G - 16
                sub = s >> 1
                for h in range(2):
                    ks = 2*(s & 1) + h
                    first = (T == 0 and s == 0 and h == 0)
                    if ty == 'A':
                        reads += [f"ds_read_b64_tr_b16 {v2(fb+4*h+2*i)}, v{vWr} offset:{slot*16384+sub*8192+ks*2048+i*512}" for i in range(2)]
                        for rho in range(2):
                            d = ACC0 + 16*rho
                            mf.append(f"{MF} {v16(d)}, {v4(fb+4*h)}, {xa(2*T+sub, ks, rho)}, {'0' if first else v16(d)}")
                    else:
                        for u in range(2):
                            reads += [f"ds_read_b64_tr_b16 {v2(fb+8*h+4*u+2*i)}, v{vWr3} offset:{slot*16384+u*8192+sub*4096+ks*1024+i*256}" for i in range(2)]
                            d = ACC0 + 16*u
                            mf.append(f"{MF} {v16(d)}, {v4(fb+8*h+4*u)}, {xa(2*T+sub, ks, 0)}, {'0' if first else v16(d)}")
            steps.append((reads, mf))
        return steps
    def emit_dma(self, item):
        pre, ins, rec = item
        for t in pre:
            if callable(t): t()
            else: self.e(t)
        tok = self.e(ins)
        if rec is not None: self.land[rec] = tok
        return 1 + len(pre)
    def tagged(self, grp, rec, pre=()):
        out = []
        for i, (p, ins) in enumerate(grp):
            out.append(((list(pre) if i == 0 else []) + p, ins, rec if i == len(grp) - 1 else None))
        return out
    def phase1(self, ty):
        e = self.e; c = self.c
        self.land = {}; self.marks = set(); self.extra = 0
        kinds = ('kv', 'guA', 'q') if ty == 'A' else ('gu1', 'gu2', 'gu3')
        for it in self.tagged(self.dma_x(0), ('x', 0)): self.emit_dma(it)
        for t in self.w_setup(kinds[0], ty): e(t)
        for it in self.tagged(self.dma_w(0, ty), ('w', 0)): self.emit_dma(it)
        if c.codepf:
            e(f"s_getpc_b64 s[{sMASK}:{sMASK+1}]")
            e.label(f"L_pc{ty}")
            e(f"""
            s_bfe_u32 s{sT0}, s2, 0x40003
            s_lshl2_add_u32 s{sT0}, s{sT0}, s{sW_}
            s_lshl_b32 s{sT0}, s{sT0}, 9
            v_and_b32 v49, 3, v41
            v_lshlrev_b32 v49, 7, v49
            v_add_u32 v49, s{sT0}, v49
            v_min_u32 v49, L_fin{ty}-L_pc{ty}, v49
            global_load_dword v58, v49, s[{sMASK}:{sMASK+1}]
            """)
        self.setup2(ty)
        for G in range(1, c.npre):
            for it in self.tagged(self.dma_x(G), ('x', G)) + self.tagged(self.dma_w(G, ty), ('w', G)): self.emit_dma(it)
        self.epoch()
        early = []; late = []
        tg = self.ep_tag(ty); gq = self.ep_g(early)
        q = [('at', 3)] + tg[:1] + gq[:5] + tg[1:] + gq[5:] + [('at', 8), ('skip', 3)]
        if ty == 'A':
            L, st = self.ep_kv()
            q += [('rate', c.kvrate)] + L + [('rate', 0), ('skip', c.kvdrain), ('lg', st), self.flag_store(sFKVp), ('mark', 'kvflag')]
            q += [('at', 16), ('skip', 3)]
            gu = self.ep_gu(ACC1, [0, 1], [f"s_lshl1_add_u32 s{sT2}, s{sRR}, s{sNH}", f"s_lshl_b32 s{sT2}, s{sT2}, 12"], early)
            kvc, M = self.ep_kvc()
            q2 = [('after', 'kvflag'), ('at', c.kvpoll)] + kvc
            q += gu
        else:
            idx = lambda k: [f"s_lshl2_add_u32 s{sT2}, s{sRR}, s{sNH}", f"s_lshl_b32 s{sT2}, s{sT2}, 12", f"s_sub_u32 s{sT2}, s{sT2}, {k*4096}"]
            q += self.ep_gu(ACC0, [0, 1], idx(4), early)
            q += [('at', 16), ('skip', 3)]
            q += self.ep_gu(ACC1, [0, 1], idx(2), early)
            q2 = []
        win = {G: [] for G in range(20)}
        for G in range(4): win[G] = self.tagged(self.dma_x(G+4), ('x', G+4)) + self.tagged(self.dma_w(G+4, ty), ('w', G+4))
        for G in range(4, 16):
            pre = self.w_setup(kinds[1], ty) if G == 4 else self.w_setup(kinds[2], ty) if G == 12 else []
            win[G] = self.tagged(self.dma_w(G+4, ty), ('w', G+4), pre)
        for G, pc in zip((5, 7, 8, 10, 11), range(5)):
            win[G] = win[G] + self.tagged(self.dma_b(pc), ('b', pc))
        nb = 5
        if ty == 'F':
            for G in (16, 17, 18):
                win[G] = self.tagged(self.dma_b(nb), ('b', nb)); nb += 1
        e.wait_tok(self.land[('w', 0)]); e.wait(lg=0); e("s_barrier")
        self.stamp(1)
        cur = self.stage_steps(0, ty)
        for t in cur[0][0]: e(t)
        dq = []
        for G in range(c.npre, 4): dq += self.tagged(self.dma_x(G), ('x', G)) + self.tagged(self.dma_w(G, ty), ('w', G))
        dpos = [(i * 12) // max(len(dq), 1) for i in range(len(dq))]
        gap = 0
        for G in range(20):
            self.G = G
            nxt = self.stage_steps(G+1, ty) if G < 19 else None
            for s in range(4):
                reads = list(cur[s+1][0]) if s < 3 else (list(nxt[0][0]) if nxt else [])
                per = (len(reads) + 2) // 3
                for m in range(4):
                    e(cur[s][1][m])
                    used = 0
                    if s == 3 and m == 0:
                        while dq: self.emit_dma(dq.pop(0))
                        if G in (7, 15, 19): self.stamp({7: 2, 15: 3, 19: 4}[G])
                        if G < 19: e.wait_tok(self.land[('w', G+1)])
                        e.wait(lg=0); e("s_barrier"); used += 2
                        for qq in (q, q2):
                            if qq and qq[0] == ('bar',): qq.pop(0)
                        dq = list(win[G]); gap = 0
                        dpos = [1 + (i * 14) // max(len(dq), 1) for i in range(len(dq))]
                    for t in reads[:per]: e(t); used += 1
                    reads = reads[per:]
                    while dq and dpos[0] <= gap:
                        used += self.emit_dma(dq.pop(0)); dpos.pop(0)
                    gap += 1
                    b = c.fillmax + self.extra - used
                    n0 = len(e.out)
                    self.pop_fill(q2, b)
                    self.pop_fill(q, b - (len(e.out) - n0))
            cur = nxt
        self.pop_fill(q, 10000, force=True)
        self.pop_fill(q2, 10000, force=True)
        if ty == 'A': tail = self.ep_q(M, late)
        else:
            tail = self.ep_gu(ACC0, [0], [f"s_lshl_b32 s{sT2}, s{sRR}, 12", f"s_add_u32 s{sT2}, s{sT2}, {24*2048 - 2*4096}"], late)
        bq = []
        for pc in range(nb, 9): bq += self.tagged(self.dma_b(pc), ('b', pc))
        trans_tok = {}
        def transfer(pc):
            def f():
                e.wait_tok(self.land[('b', pc)])
                for t in self.b_transfer(pc): trans_tok[pc] = e(t)
            return f
        def trans_wait(pc):
            return lambda: e.wait_tok(trans_tok[pc])
        transfer(0)()
        refill = []
        for pc in range(9):
            pre = ([transfer(pc+1)] if pc < 8 else []) + [trans_wait(pc)]
            refill.append(self.tagged(self.dma_b(9+pc), ('b', 9+pc), pre))
        for r in refill: bq += r
        flags_done = {'e': False, 'l': False}
        def try_flags(force=False):
            if not flags_done['e'] and (force or all(e.vm_done(s['t']) for s in early)):
                e.wait_tok(*[s['t'] for s in early]); e(self.flag_store(sFH)); flags_done['e'] = True
            if not flags_done['l'] and not tail and (force or all(e.vm_done(s['t']) for s in late)):
                e.wait_tok(*[s['t'] for s in late]); e(self.flag_store(sFH, 128)); flags_done['l'] = True
        nd = 0
        while tail:
            self.pop_fill(tail, 14, force=True)
            if bq: self.emit_dma(bq.pop(0)); nd += 1
            if nd == 6 and not flags_done['e']:
                e.wait_tok(*[s['t'] for s in early])
            try_flags()
        self.stamp(5)
        lastlate = len(bq)
        k = 0
        pollp = TMP + 0; fo = vX
        load_e = f"buffer_load_dwordx2 {v2(vX+2)}, v{fo}, {srd(sWS)}, s{sT1} offen sc1"
        while bq:
            if len(bq) == 6:
                try_flags(force=True)
                e(f"""
                s_lshl2_add_u32 s{sT1}, s{sT3}, s{sW_}
                s_lshl_b32 s{sT1}, s{sT1}, 8
                s_add_u32 s{sT1}, s{sT1}, {WS_FH}
                v_lshrrev_b32 v{fo}, 1, v{vL16}
                v_and_b32 v{fo}, 0x38, v{fo}
                """)
                e(load_e)
            self.emit_dma(bq.pop(0)); k += 1
            if k == 10:
                if not flags_done['e']: e.wait_tok(*[s['t'] for s in early])
                e.wait_tok(*[s['t'] for s in late])
            try_flags()
        self.poll_check("e" + ty, load_e, [f"v_cmp_eq_u64 vcc, s[{sTAG}:{sTAG+1}], {v2(vX+2)}"], "s_cmp_eq_u64 vcc, -1")
        self.stamp(6)
    def phase2(self, ty):
        e = self.e; c = self.c
        look = c.look
        ring = lambda idx, rho: TMP + 8*(idx % 8) + 4*rho
        def aload(idx):
            L = []
            if idx and idx % 2 == 0: L.append(f"s_add_u32 s{sA2C}, s{sA2C}, 4096")
            for rho in range(2):
                L.append(f"buffer_load_dwordx4 {v4(ring(idx, rho))}, v{vL16}, {srd(sWS)}, s{sA2C} offen offset:{2048*(idx%2)+1024*rho} sc1")
            return L
        for idx in range(look):
            for t in aload(idx): e(t)
        fo = vX; vg = vX + 1; p = vX + 2; G0 = vXr; G1 = vXr + 2
        e(f"""
        v_lshrrev_b32 v{vXr+4}, 7, v{vL16}
        v_lshlrev_b32 v{vXr+4}, 8, v{vXr+4}
        s_lshl_b32 s{sT0}, s{sW_}, 8
        s_add_u32 s{sT0}, s{sT0}, 128
        v_mov_b32 v{vXr+5}, s{sT0}
        v_cmp_gt_u32 vcc, 512, v{vL16}
        s_lshl_b32 s{sT1}, s{sT3}, 10
        s_add_u32 s{sT1}, s{sT1}, {WS_FH}
        v_cndmask_b32 v{vXr+4}, v{vXr+5}, v{vXr+4}, vcc
        v_add_u32 v{fo}, v{fo}, v{vXr+4}
        v_lshrrev_b32 v{vg}, 2, v{vL16}
        v_and_b32 v{vg}, 0x7c, v{vg}
        """)
        load_l = f"buffer_load_dwordx2 {v2(p)}, v{fo}, {srd(sWS)}, s{sT1} offen sc1"
        def bfrag(idx, nt):
            pc = idx // 2
            if pc < 9: return v4(16*pc + 8*(idx % 2) + 4*nt, 'a')
            return v4(vFrag + 8*(idx % 2) + 4*nt)
        def breads(idx):
            pc = idx // 2
            if pc < 9 or idx > 35: return []
            return [self.b_read(pc, idx % 2, nt, i, v2(vFrag + 8*(idx % 2) + 4*nt + 2*i)) for nt in range(2) for i in range(2)]
        scale = []
        for idx in range(36):
            acc = ACC0 if idx < 28 else ACC1
            rd = breads(idx + 1)
            if rd and (idx + 1) % 2 == 0: e.wait_tok(self.land[('b', (idx + 1) // 2)])
            n = idx + look
            ld = aload(n) if n < 36 else []
            if n == 24 - 4: ld = [load_l] + ld
            if n == 24:
                self.poll_check("l" + ty, load_l, [f"v_cmp_eq_u64 vcc, s[{sTAG}:{sTAG+1}], {v2(p)}"], "s_cmp_eq_u64 vcc, -1")
                self.stamp(7)
                ld = [f"s_lshl_b32 s{sT0}, s{sT3}, 8",
                      f"buffer_load_dword v{G0}, v{vg}, {srd(sWS)}, s{sT0} offen offset:{WS_G} sc1",
                      f"buffer_load_dword v{G0+1}, v{vg}, {srd(sWS)}, s{sT0} offen offset:{WS_G+128} sc1"] + ld
            if idx == 29:
                scale = [f"v_sub_f32 v{G1}, 1.0, v{G0}", f"v_sub_f32 v{G1+1}, 1.0, v{G0+1}"]
                scale += [f"v_mul_f32 v{ACC0+k}, v{ACC0+k}, v{G1 + ((k//16) & 1)}" for k in range(64)]
            m = 0
            for nt in range(2):
                for rho in range(2):
                    d = acc + 32*nt + 16*rho
                    cc = '0' if idx in (0, 28) else v16(d)
                    e(f"{MF} {v16(d)}, {bfrag(idx, nt)}, {v4(ring(idx, rho))}, {cc}")
                    for t in rd[:2]: e(t)
                    rd = rd[2:]
                    for t in scale[:3]: e(t)
                    scale = scale[3:]
                    m += 1
            for t in ld: e(t)
        for t in scale: e(t)
        wa = vXr + 4
        e(f"""
        v_lshrrev_b32 v40, 4, v{vL16}
        v_and_b32 v41, 31, v40
        v_lshrrev_b32 v42, 5, v40
        v_bfe_u32 v43, v40, 1, 1
        v_and_b32 v44, 1, v40
        v_lshl_or_b32 v43, v44, 1, v43
        v_and_or_b32 v43, v40, 4, v43
        v_xor_b32 v43, v43, v42
        v_lshlrev_b32 v41, 7, v41
        v_lshl_add_u32 v41, v43, 4, v41
        v_add_u32 v{wa}, s{sM0W}, v41
        v_xor_b32 v{wa+1}, 32, v{wa}
        v_xor_b32 v{wa+2}, 64, v{wa}
        v_xor_b32 v{wa+3}, 96, v{wa}
        """)
        e(f"""
        v_lshrrev_b32 v41, 3, v40
        v_bfe_u32 v43, v41, 1, 1
        v_and_b32 v44, 1, v41
        v_lshl_or_b32 v43, v44, 1, v43
        v_and_or_b32 v43, v41, 4, v43
        v_and_b32 v44, 3, v40
        v_lshlrev_b32 v44, 1, v44
        v_xor_b32 v43, v43, v44
        v_lshlrev_b32 v45, 7, v41
        v_lshl_add_u32 v45, v43, 4, v45
        v_bfe_u32 v44, v40, 2, 1
        v_lshl_add_u32 v45, v44, 15, v45
        s_lshl_b32 s{sT0}, s{sMH}, 14
        s_lshl_b32 s{sT1}, s{sNH}, 11
        s_add_u32 s{sT0}, s{sT0}, s{sT1}
        v_add_u32 v46, s{sT0}, v45
        v_xor_b32 v47, 16, v46
        v_and_b32 v44, 0x70, v{vL16}
        v_lshl_add_u32 v48, v41, 10, v44
        s_lshl2_add_u32 s{sT0}, s{sT3}, s{sW_}
        s_lshl_b32 s{sT0}, s{sT0}, 14
        s_bfe_u32 s{sT1}, s2, 0x30003
        s_lshl_b32 s{sT1}, s{sT1}, 7
        s_add_u32 s{sT0}, s{sT0}, s{sT1}
        s_add_u32 s{sT1}, s{sT0}, 8192
        """)
        for nt in range(2):
            for rho in range(2):
                for qd in range(4):
                    b = 32*nt + 16*rho + 4*qd
                    for k in range(4): e(f"v_fmac_f32 v{ACC0+b+k}, v{ACC1+b+k}, v{G0+rho}")
                    e(f"ds_write_b128 v{wa+qd}, {v4(ACC0+b)} offset:{(2*nt+rho)*16384}")
        e.wait(lg=0); e("s_barrier")
        R = TMP
        for grp in range(2):
            for wv in range(4):
                for h in range(2):
                    e(f"ds_read_b128 {v4(R + 32*grp + 8*wv + 4*h)}, v{46+h} offset:{wv*4096 + grp*1024}")
        for grp in range(2):
            b = R + 32*grp
            for k in range(8): e(f"v_add_f32 v{b+k}, v{b+k}, v{b+8+k}")
            for k in range(8): e(f"v_add_f32 v{b+16+k}, v{b+16+k}, v{b+24+k}")
            for k in range(8): e(f"v_add_f32 v{b+k}, v{b+k}, v{b+16+k}")
            for k in range(4): e(f"v_cvt_pk_bf16_f32 v{b+k}, v{b+2*k}, v{b+2*k+1}")
            e(f"buffer_store_dwordx4 {v4(b)}, v48, {srd(sOUT)}, s{sT0+grp} offen")
        if c.stamps:
            e.wait(vm=0)
            self.stamp(8)
            e.wait(lg=0)
            e(f"s_lshl2_add_u32 s{sT0}, s2, s{sW_}\ns_lshl_b32 s{sT0}, s{sT0}, 6\ns_add_u32 s{sT0}, s{sT0}, {WS_STAMP}")
            for i in range(9):
                e(f"v_mov_b32 v40, s{STAMP0+2*i}")
                e(f"buffer_store_dword v40, v{vOne}, {srd(sWS)}, s{sT0} offen offset:{4*i}")
        e("s_endpgm")
    def build(self):
        e = self.e
        self.prologue()
        snap = e.snapshot()
        for ty in ('A', 'F'):
            e.restore(snap)
            if ty == 'F': e.label("L_typeF")
            self.phase1(ty); self.phase2(ty)
            e.label(f"L_fin{ty}")
            for l in self.slow: e.raw(l)
            self.slow = []
        e.label("L_end"); e("s_endpgm")
        for i in range(64): e.raw("    s_nop 0")
        K = NAME + "_kernel"
        head = f"""; Fused gated-mix(linear attention block, ReGLU FFN), one launch, 256 workgroups (one per CU).
; Kernarg: 0 x, 8 wqkv, 16 wo, 24 (unused), 32 W_gate, 40 W_up, 48 W_down, 56 gate_w, 64 out, 72 debug, 80 ws
; @launch grid=(256,1,1) block=(256,1,1) lds=163840
.amdgcn_target "amdgcn-amd-amdhsa--gfx950"
.text
.globl {K}
.p2align 8
.type {K},@function
{K}:
"""
        foot = f""".section .rodata,"a"
.p2align 6
.amdhsa_kernel {K}
  .amdhsa_next_free_vgpr 512
  .amdhsa_next_free_sgpr 102
  .amdhsa_accum_offset 256
  .amdhsa_group_segment_fixed_size 0
  .amdhsa_kernarg_size 88
  .amdhsa_user_sgpr_count 2
  .amdhsa_user_sgpr_kernarg_segment_ptr 1
  .amdhsa_system_sgpr_workgroup_id_x 1
.end_amdhsa_kernel
"""
        return head + e.text() + foot

def make(**kw):
    c = Cfg()
    for k, v in kw.items(): setattr(c, k, v)
    g = Gen(c)
    t = g.build()
    return t, g

if __name__ == "__main__":
    t, g = make()
    open(sys.argv[1] if len(sys.argv) > 1 else "k1.s", "w").write(t)
    print("counts", g.e.count, "nops", g.e.nnop)
```
